```python
import torch

def _softmax(x, axis=-1):
    return torch.softmax(x, dim=axis)
def _gelu(x):
    return torch.nn.functional.gelu(x, approximate="tanh")
def _silu(x):
    return torch.nn.functional.silu(x)
def _sigmoid(x):
    return torch.sigmoid(x)
def _layernorm(x, axis=-1, eps=1e-5):
    m = x.mean(dim=axis, keepdim=True)
    v = x.var(dim=axis, keepdim=True, unbiased=False)
    return (x - m) / torch.sqrt(v + eps)
def _scatter_add(tgt, idx, src, axis=0):
    return tgt.clone().index_add_(axis, idx, src)
def _segment_sum(src, seg, n):
    out = torch.zeros((n,) + src.shape[1:], dtype=src.dtype)
    return out.index_add_(0, seg, src)
def _pad(x, pw):
    flat = tuple(v for pair in reversed(pw) for v in pair)
    return torch.nn.functional.pad(x, flat)

kernel_name = 'gated_mix__sliding_block_cached__swiglu_ffn__decode'

def setup_inputs():

    _w = (lambda a: (lambda t: t.to(torch.bfloat16) if t.is_floating_point() else t)(torch.as_tensor(a)))
    def _A_setup():
        B, Sq, D = 1, 1, 448
        Hq, Hkv, Sk, Dh = 16, 8, 65536, 256
        assert Hq % Hkv == 0, (Hq, Hkv)
        return {
            "x": _w((lambda *s: torch.randn(*s, dtype=torch.bfloat16) * 0.05)(B, Sq, D)),
            "k_cache": _w((lambda *s: torch.randn(*s, dtype=torch.bfloat16) * 3.2)(B, Hkv, Sk, Dh)),
            "v_cache": _w((lambda *s: torch.randn(*s, dtype=torch.bfloat16) * 0.4)(B, Hkv, Sk, Dh)),
            "wq": _w((lambda *s: torch.randn(*s, dtype=torch.bfloat16) * 3.2)(D, Hq * Dh) * (D ** -0.5)),
            "wo": _w((lambda *s: torch.randn(*s, dtype=torch.bfloat16) * 0.4)(Hq * Dh, D) * ((Hq * Dh) ** -0.5)),
        }
    _A_in = _A_setup()

    def _B_setup():
        B, S, D, F = 1, 1, 448, 1792
        return {
            "x": _w((lambda *s: torch.randn(*s, dtype=torch.bfloat16) * 0.05)(B, S, D)),
            "w_gate": _w((lambda *s: torch.randn(*s, dtype=torch.bfloat16) * 0.05)(D, F)),
            "w_up": _w((lambda *s: torch.randn(*s, dtype=torch.bfloat16) * 0.05)(D, F)),
            "w_down": _w((lambda *s: torch.randn(*s, dtype=torch.bfloat16) * 0.05)(F, D)),
        }
    _B_in = _B_setup()

    return {
        "A_x": _A_in["x"],
        "A_k_cache": _A_in["k_cache"],
        "A_v_cache": _A_in["v_cache"],
        "A_wq": _A_in["wq"],
        "A_wo": _A_in["wo"],
        "B_x": _B_in["x"],
        "B_w_gate": _B_in["w_gate"],
        "B_w_up": _B_in["w_up"],
        "B_w_down": _B_in["w_down"],
        "gate_w": _w((lambda *s: torch.randn(*s, dtype=torch.bfloat16) * 0.05)(448) * 16.0),
    }

def reference(A_x, A_k_cache, A_v_cache, A_wq, A_wo, B_x, B_w_gate, B_w_up, B_w_down, gate_w):
    def _A_ref(x, k_cache, v_cache, wq, wo):
        B, Sq, D = x.shape
        Hq, Dh = 16, 256
        Hkv, Sk = k_cache.shape[1], k_cache.shape[2]
        W = min(4096, max(256, Sk // 4))
        rep = Hq // Hkv
        q = (lambda x, *d: x.permute(*d))((x @ wq).reshape(B, Sq, Hq, Dh), 0, 2, 1, 3)
        k = (lambda x, n, axis: torch.repeat_interleave(x, n, dim=axis))(k_cache[:, :, Sk - W:, :], rep, axis=1)
        v = (lambda x, n, axis: torch.repeat_interleave(x, n, dim=axis))(v_cache[:, :, Sk - W:, :], rep, axis=1)
        scores = torch.einsum("bhqd,bhkd->bhqk", q, k) * (Dh ** -0.5)
        p = _softmax(scores, axis=-1)
        o = torch.einsum("bhqk,bhkd->bhqd", p, v)
        return (lambda x, *d: x.permute(*d))(o, 0, 2, 1, 3).reshape(B, Sq, Hq * Dh) @ wo

    def _B_ref(x, w_gate, w_up, w_down):
        g = _silu(x @ w_gate)
        u = x @ w_up
        return (g * u) @ w_down

    x = A_x
    g = _sigmoid((x * gate_w).sum(-1, keepdims=True))
    a = _A_ref(x, A_k_cache, A_v_cache, A_wq, A_wo)
    b = _B_ref(x, B_w_gate, B_w_up, B_w_down)
    return g * a + (1 - g) * b
```

```python
import sys, struct
from asmlib import *
import hazard

XB=0; WQ=1024; WG=15360; QL=29696; OB=30720; OBS=2112; MB=47616; LB=47632; GB=47888; FB=47904; CB=48160; HB=48224; LDSZ=48288
XI=0x1000; ST=0x2000; QB=0x10000; GU=0x20000; P1=0x40000; P2=0xC0000; WSZ=0x140000
CEXP = 0.0625*1.4426950408889634
NL2E = -1.4426950408889634
def fhex(f): return "0x%08x" % struct.unpack("<I", struct.pack("<f", f))[0]
SPIN = 4000000
FULL = "row_mask:0xf bank_mask:0xf"
NST = 20

def gen(stamps=False, nt=" nt", lds=LDSZ, fast=True, p1sleep=0, p2sleep=0, hprio=3, fair=4, spos=14, sw=0, nbar0=1, tailpos='g2', gpos=4,
        padto=0, dbgout=False, qld="", p1ld="", p2ld="", burst=99, fair2=None, f2at=99, pre='', p1delay=0, p2pre=False, ack=False, own=True, pre2=None, abl='', rot=4, crot=0, latin=0, p2gap=0, outst='', noep=False, b3c=False, prepos='mid', qdiag=False, qafter=True, p2ack=True, cons='no7', red2=True, xlds=True, padx=None, light=7, hlate=True, perm=0, lw=None, lset=4, gmap=0, xis=2, kperm=0, qperm=0, qsx=0, qboff=0, pvs=True, xorc=True, ovl=True, bt=2, satom=False, wins=((9,3),), tafter=True, dbl=True, p2dbl=0, diag=0, nearbf=True, hot=True, al=None, rx='j+s+h', pre2bt=None, qx=True, hoist=True):
    o = []; e = o.append
    QB = globals()['QB'] + qboff
    seen = set()
    def stamp(k):
        role = 'h' if any(x.startswith("L_helper:") for x in o) else 'k'
        if diag and (role, k) in seen: return
        seen.add((role, k))
        if stamps is True or (stamps == "light" and k in (0, 12)): e("s_memrealtime s[%d:%d]" % (70+2*k, 71+2*k))
    def dump(ks, slot0):
        e("s_mov_b64 exec, -1\ns_waitcnt lgkmcnt(0)")
        e("s_mul_i32 s34, s2, %d\ns_add_u32 s34, s34, 0x20000000\ns_add_u32 s28, s28, s34\ns_addc_u32 s29, s29, 0\nv_mov_b32 v0, 0" % (NST*8))
        for k, sl in ks: e("v_mov_b32 v2, s%d\nv_mov_b32 v3, s%d\nglobal_store_dwordx2 v0, v[2:3], s[28:29] offset:%d\ns_nop 1" % (70+2*k, 71+2*k, sl*8))
    def dpp(q): return "quad_perm:[%d,%d,%d,%d] %s" % (q,q,q,q,FULL)
    e(header(256, 576, lds))
    e("s_cmp_ge_u32 s2, 256\ns_cbranch_scc1 L_end")
    if perm == 1: e("s_lshr_b32 s3, s2, 3\ns_and_b32 s3, s3, 7\ns_xor_b32 s2, s2, s3")
    if perm == 2: e("s_and_b32 s3, s2, 0x86\ns_cmp_eq_u32 s3, 0x80\ns_cselect_b32 s3, 1, 0\ns_xor_b32 s2, s2, s3")
    if perm == 3: e("s_cmp_eq_u32 s2, 250\ns_cselect_b32 s3, 1, 0\ns_cmp_eq_u32 s2, 251\ns_cselect_b32 s3, 1, s3\ns_xor_b32 s2, s2, s3")
    stamp(0)
    if padto or dbgout: e("s_memrealtime s[98:99]")
    e("s_load_dwordx16 s[4:19], s[0:1], 0\ns_load_dwordx8 s[20:27], s[0:1], 64\ns_load_dwordx2 s[28:29], s[0:1], 96")
    e("v_lshrrev_b32 v2, 6, v0\nv_and_b32 v1, 63, v0")
    e("s_and_b32 s31, s2, 7\ns_lshr_b32 s32, s2, 3")
    e("v_readfirstlane_b32 s30, v2")
    e("s_lshl_b32 s33, s31, 5\ns_add_u32 s33, s33, s32      ; s33 = p' = hk*32+s")
    e("s_cmp_lg_u32 s30, 8\ns_cbranch_scc1 L_kv\ns_getpc_b64 s[34:35]\nL_pc:\ns_lshl_b32 s36, s32, 8\nv_lshlrev_b32 v2, 2, v1\nv_add_u32 v2, s36, v2\nv_min_u32 v2, L_end-L_pc, v2\nglobal_load_dword v120, v2, s[34:35]\nNEARBFs_branch L_helper\nL_kv:")
    if hot:
        e("s_lshr_b32 s34, s32, 3\ns_mul_i32 s34, s34, 7\ns_add_u32 s57, s34, s30")
        e("s_lshl_b32 s34, s57, 7\ns_add_u32 s34, s34, s31\ns_and_b32 s35, s32, 7\ns_lshl3_add_u32 s34, s34, s35\ns_lshl_b32 s48, s34, 7")
        e("s_lshl_b32 s39, 1, 17\ns_mov_b32 s47, s39\ns_lshl_b32 s50, 1, 16\ns_movk_i32 s38, 0x2000\ns_add_u32 s49, s30, s30\ns_add_u32 s49, s49, 1\ns_lshl_b32 s49, s49, 10")
        e("s_lshl_b32 s34, s31, 9\ns_add_u32 s34, s34, s32\ns_lshl3_add_u32 s34, s34, s30\ns_lshl_b32 s34, s34, 13\ns_add_u32 s34, s34, %d" % (61440*512))
        op = "s_xor_b32" if "^" in rx else "s_add_u32"
        first = True
        for t in rx.replace("^", "+").split("+"):
            reg = {"j": "s30", "s": "s32", "h": "s31"}[t[0]]
            if len(t) > 1: e("s_lshr_b32 s35, %s, %s" % (reg, t[1:])); reg = "s35"
            e("s_mov_b32 s101, %s" % reg if first else "%s s101, s101, %s" % (op, reg)); first = False
        e("s_and_b32 s98, s101, 3\ns_lshl_b32 s98, s98, 11\ns_add_u32 s99, s101, 1\ns_and_b32 s99, s99, 3\ns_lshl_b32 s99, s99, 11")
        e("v_lshrrev_b32 v8, 4, v1            ; c\nv_and_b32 v9, 3, v1\nv_lshl_add_u32 v2, v8, 2, v9\nv_lshlrev_b32 v2, 4, v2\nv_bfe_u32 v9, v1, 2, 2\nv_lshl_add_u32 v2, v9, 9, v2   ; v2 = K off")
        e("v_lshrrev_b32 v5, 3, v1\nv_and_b32 v4, 7, v1\nv_lshlrev_b32 v4, 4, v4\ns_cmp_eq_u32 s30, 7\ns_cselect_b32 s35, 7, 13\nv_lshl_add_u32 v6, v5, s35, v4")
        e("s_cselect_b32 s48, 0, s48\ns_cselect_b32 m0, 0, s49\ns_cselect_b32 s46, 896, s50\ns_addk_i32 s49, 0x400\ns_cmp_eq_u32 s30, 7\ns_cmovk_i32 s49, %d\ns_cbranch_scc1 L_w7\ns_mov_b32 s46, %d\nL_w7:" % (OB, 15*8192+128))
        if al is not None: e(".p2align 6\n" + "s_nop 0\n"*al)
        e("s_waitcnt lgkmcnt(0)")
        if diag: stamp(2)
        e("s_cselect_b64 s[44:45], s[4:5], s[10:11]\ns_add_u32 s44, s44, s48\ns_addc_u32 s45, s45, 0\nbuffer_load_dwordx4 v6, s[44:47], 0 offen lds\ns_mov_b32 m0, s49\ns_add_u32 s36, s6, s34\nbuffer_load_dwordx4 v6, s[44:47], s50 offen nt lds\ns_addc_u32 s37, s7, 0")
    else:
        e("v_lshrrev_b32 v5, 3, v1\nv_and_b32 v4, 7, v1\nv_lshlrev_b32 v4, 4, v4\nv_lshl_add_u32 v6, v5, 13, v4\nv_mul_u32_u24 v5, 3584, v5\nv_add_u32 v86, v5, v4\nv_lshlrev_b32 v7, 4, v1")
        e("s_lshr_b32 s34, s32, 3\ns_mul_i32 s34, s34, 7\ns_add_u32 s57, s34, s30")
        e("s_lshl_b32 s34, s57, 17\ns_lshl_b32 s35, s31, 10\ns_add_u32 s34, s34, s35\ns_and_b32 s35, s32, 7\ns_lshl_b32 s35, s35, 7\ns_add_u32 s48, s34, s35")
        e("s_mov_b32 s39, 0x20000\ns_mov_b32 s46, %d\ns_mov_b32 s47, s39\ns_lshl_b32 s49, s30, 11\ns_add_u32 m0, s49, %d\ns_mov_b32 s50, 0x10000" % (15*8192+128, WQ))
        e("v_lshrrev_b32 v8, 4, v1            ; c\nv_and_b32 v9, 3, v1\nv_lshl_add_u32 v2, v8, 2, v9\nv_lshlrev_b32 v2, 4, v2\nv_bfe_u32 v9, v1, 2, 2\nv_lshl_add_u32 v2, v9, 9, v2   ; v2 = K off")
        e("s_lshl_b32 s34, s31, 25\ns_xor_b32 s35, s32, KPERM\ns_lshl_b32 s35, s35, 16\ns_add_u32 s34, s34, s35\n%s\ns_lshl_b32 s35, s35, 13\ns_add_u32 s34, s34, s35\ns_add_u32 s34, s34, %d" % ({0: "s_mov_b32 s35, s30", 1: "s_lshr_b32 s35, s32, 2\ns_add_u32 s35, s35, s30\ns_and_b32 s35, s35, 7", 2: "s_add_u32 s35, s31, s30\ns_and_b32 s35, s35, 7", 3: "s_mul_i32 s35, s2, 0x85EBCA77\ns_lshr_b32 s35, s35, 29\ns_add_u32 s35, s35, s30\ns_and_b32 s35, s35, 7"}[crot], 61440*512))
        e("s_movk_i32 s38, 0x2000\ns_movk_i32 s56, 0x1000\ns_cmp_eq_u32 s30, 7")
        e("s_waitcnt lgkmcnt(0)")
        if diag: stamp(2)
        e("s_cbranch_scc1 L_x")
        e("s_add_u32 s44, s10, s48\ns_addc_u32 s45, s11, 0\nbuffer_load_dwordx4 v6, s[44:47], 0 offen%s lds\ns_add_u32 m0, m0, 1024\ns_nop 0\nbuffer_load_dwordx4 v6, s[44:47], s50 offen%s lds\ns_branch L_x2" % (nt, nt))
        e("L_x:\ns_mov_b32 s44, s4\ns_mov_b32 s45, s5\ns_movk_i32 s46, 896\ns_mov_b32 m0, %d\ns_nop 0\nbuffer_load_dwordx4 v7, s[44:47], 0 offen lds\nL_x2:" % XB)
        e("s_add_u32 s36, s6, s34\ns_addc_u32 s37, s7, 0")
        if rot:
            src = {1: "s_add_u32 s14, s30, s32", 2: "s_mov_b32 s14, s30", 3: "s_mov_b32 s14, s32", 4: "s_add_u32 s14, s30, s32\ns_add_u32 s14, s14, s31", 5: "s_lshr_b32 s14, s30, 1", 6: "s_lshl_b32 s14, s2, 3\ns_add_u32 s14, s14, s30\ns_mul_i32 s14, s14, 0x9E3779B1\ns_lshr_b32 s14, s14, 29", 7: "s_lshr_b32 s14, s32, 2\ns_add_u32 s14, s14, s32\ns_add_u32 s14, s14, s30\ns_add_u32 s14, s14, s31", 8: "s_lshr_b32 s14, s32, 2\ns_add_u32 s14, s14, s32\ns_add_u32 s14, s14, s30\ns_add_u32 s14, s14, s31\ns_lshr_b32 s15, s31, 2\ns_add_u32 s14, s14, s15\ns_lshr_b32 s15, s30, 2\ns_add_u32 s14, s14, s15\ns_lshr_b32 s15, s32, 4\ns_add_u32 s14, s14, s15"}[rot]
            e(src + "\ns_lshl_b32 s14, s14, 11\ns_add_u32 s15, s14, 0x800\ns_add_u32 s26, s14, 0x1000\ns_add_u32 s27, s14, 0x1800\ns_and_b32 s14, s14, 0x1800\ns_and_b32 s15, s15, 0x1800\ns_and_b32 s26, s26, 0x1800\ns_and_b32 s27, s27, 0x1800")
    if latin:
        e("s_lshr_b32 s14, s14, 11\nv_bfe_u32 v9, v1, 2, 2\nv_and_b32 v10, 0x1ff, v2\nv_lshl_add_u32 v10, v9, 11, v10\nv_add_u32 v9, s14, v9")
        for g in range(4): e("v_add_u32 v11, %d, v9\nv_and_b32 v11, 3, v11\nv_lshl_add_u32 v%d, v11, 9, v10" % (g, 144+g))
    KR=16; VR=48
    WDR=[112,116]; WOR=[120,124,128,132]
    seq = [("k", i) for i in range(8)] + [("v", i) for i in range(8)]
    seq[gpos:gpos] = [("g", 0), ("g", 1)]
    NL = 18
    def win(i):
        if wins:
            w = fair
            for at, ww in wins:
                if i >= at: w = ww
            return w
        return fair2 if i >= f2at else fair
    st = dict(nl=0, tail=False, bg=False)
    def nextload():
        i = st['nl']; st['nl'] += 1
        kind, k = seq[i]
        w = win(i)
        if st.get('late') and lw[1] <= i < lw[2]: w = lw[0]
        if i >= w and i < burst: e("s_waitcnt vmcnt(%d)" % (w-1))
        if not st['bg'] and i - w >= gpos + 1: e("s_barrier"); st['bg'] = True
        if kind == "g":
            e("s_add_u32 m0, s58, %d\ns_nop 0\nbuffer_load_dwordx4 v86, s[64:67], %s offen%s lds" % (WG+1024*k, "s61" if k else "0", nt).__mod__(()) if False else "s_add_u32 m0, s58, %d\ns_nop 0\nbuffer_load_dwordx4 v86, s[64:67], %s offen%s lds" % (WG+1024*k, "s35" if k else "0", nt))
            return
        base, vo, srd = (KR, 2, 36) if kind == "k" else (VR, 3, 40)
        g, h = k//2, k%2
        off = g*2048 + h*256
        if latin:
            e("buffer_load_dwordx4 v[%d:%d], v%d, s[%d:%d], 0 offen offset:%d%s" % (base+8*g+4*h, base+8*g+4*h+3, (144 if kind == "k" else 148)+g, srd, srd+3, h*256, nt)); return
        if rot:
            e("buffer_load_dwordx4 v[%d:%d], v%d, s[%d:%d], s%d offen offset:%d%s" % (base+8*g+4*h, base+8*g+4*h+3, vo, srd, srd+3, ((98,99,100,101) if hot else (14,15,26,27))[g], h*256, nt)); return
        e("buffer_load_dwordx4 v[%d:%d], v%d, s[%d:%d], %s offen offset:%d%s" % (base+8*g+4*h, base+8*g+4*h+3, vo, srd, srd+3, "s56" if off >= 4096 else "0", off % 4096, nt))
    def tail_():
        for rg in range(2): e("buffer_load_dwordx4 v[%d:%d], v104, s[52:55], 0 offen offset:%d%s" % (WDR[rg], WDR[rg]+3, rg*3584, nt))
        for rg in range(4): e("buffer_load_dwordx4 v[%d:%d], v104, s[48:51], %s offen offset:%d%s" % (WOR[rg], WOR[rg]+3, "s69" if rg >= 2 else "0", (rg%2)*3584, nt))
    def tail():
        e("s_cmp_ge_u32 s30, 4\ns_cbranch_scc1 L_notail"); tail_(); e("L_notail:"); st['tail'] = True
    nbarf = 0
    assert gpos >= fair
    if diag == 2: stamp(1)
    for i in range(fair):
        if i == 0 or nbar0 == 1: e("s_barrier    ; Bf"); nbarf += 1
        if diag == 2: stamp((10, 11, 7, 9)[i])
        nextload()
    if diag: stamp(3)
    if hot: e("s_xor_b32 s100, s98, 0x1000\ns_xor_b32 s101, s99, 0x1000\nv_mul_u32_u24 v5, 3584, v5\nv_add_u32 v86, v5, v4")
    e("v_and_b32 v9, 15, v1\nv_lshlrev_b32 v9, 4, v9     ; n*16\nv_lshl_add_u32 v3, v8, 9, v9    ; v3 = V off")
    if latin:
        e("v_lshl_add_u32 v10, v8, 11, v9\nv_add_u32 v12, s14, v8")
        for g in range(4): e("v_add_u32 v11, %d, v12\nv_and_b32 v11, 3, v11\nv_lshl_add_u32 v%d, v11, 9, v10" % (g, 148+g))
    e("s_add_u32 s40, s8, s34\ns_addc_u32 s41, s9, 0\ns_mov_b32 s42, s38\ns_mov_b32 s43, 0x20000")
    e("v_and_b32 v10, 1, v1\nv_cmp_eq_u32 vcc, 1, v10\nv_mov_b32 v11, 0xffff\nv_mov_b32 v12, 0xffff0000\nv_bfe_u32 v10, v1, 1, 2\nv_cndmask_b32 v11, v11, v12, vcc")
    for r in range(4):
        e("v_cmp_eq_u32 vcc, %d, v10\ns_nop 1\nv_cndmask_b32 v%d, 0, v11, vcc" % (r, 4+r))
    e("s_mov_b32 s44, s28\ns_mov_b32 s45, s29\ns_mov_b32 s46, %d\ns_mov_b32 s47, 0x20000" % WSZ)
    e("s_mul_i32 s34, s33, %d\ns_add_u32 s48, s12, s34\ns_addc_u32 s49, s13, 0\ns_mov_b32 s50, %d\ns_mov_b32 s51, 0x20000" % (16*896, 16*896))
    e("s_cmp_gt_u32 s31, %d\ns_subb_u32 s68, s31, 0     ; ffn group\ns_lshl_b32 s34, s68, 5\ns_add_u32 s34, s34, s32\ns_mul_i32 s34, s34, %d" % (light, 8*896))
    e("s_cmp_eq_u32 s31, LIGHT\ns_cselect_b32 s34, 0, s34\ns_cselect_b32 s54, 0, %d\ns_add_u32 s52, s20, s34\ns_addc_u32 s53, s21, 0\ns_mov_b32 s55, 0x20000\ns_movk_i32 s69, 7168" % (8*896))
    e("v_mul_u32_u24 v104, 896, v8\ns_lshl_b32 s34, s30, 8\nv_add3_u32 v104, v104, v9, s34\nv_add_u32 v10, s34, v9\nv_cmp_le_u32 vcc, 896, v10\nv_mov_b32 v10, 0x7f000000\ns_nop 0\nv_cndmask_b32 v104, v104, v10, vcc")
    e("v_bfe_u32 v10, v1, 3, 1\nv_lshlrev_b32 v106, 2, v10   ; h*4\nv_lshlrev_b32 v10, 9, v10\nv_and_b32 v11, 3, v1\nv_lshl_add_u32 v11, v8, 2, v11\nv_lshl_add_u32 v105, v11, 4, v10")
    e("v_mov_b32 v107, 0\ns_mov_b32 s60, 0x01010101\ns_mov_b32 s61, 0x01010101\ns_mov_b32 s59, %s" % fhex(CEXP))
    e("v_lshrrev_b32 v136, 3, v1\nv_lshlrev_b32 v136, 2, v136\ns_lshl_b32 s34, s30, 5\nv_add_u32 v136, s34, v136")
    e("v_lshrrev_b32 v137, 5, v1\nv_lshlrev_b32 v137, 10, v137\nv_lshl_add_u32 v137, v9, 1, v137\nv_bfe_u32 v10, v1, 4, 1\nv_lshl_add_u32 v137, v10, 4, v137\ns_mul_i32 s34, s30, %d\nv_add_u32 v137, s34, v137" % (2048 if red2 else OBS))
    if red2: e("v_lshlrev_b32 v139, 2, v0\nv_add_u32 v138, %d, v139" % OB)
    else: e("v_and_b32 v11, 3, v0\nv_mul_u32_u24 v138, %d, v11\nv_lshrrev_b32 v139, 2, v0\nv_lshlrev_b32 v139, 4, v139\nv_add_u32 v138, v138, v139" % OBS)
    e("v_lshlrev_b32 v140, 1, v9\ns_lshl_b32 s34, s30, 9\nv_add_u32 v140, s34, v140\nv_cmp_le_u32 vcc, 0x700, v140\nv_lshl_add_u32 v140, v10, 4, v140\nv_mov_b32 v12, 0x7f000000\nv_cndmask_b32 v140, v140, v12, vcc\nv_lshlrev_b32 v141, 4, v8")
    e("s_lshl_b32 s34, s33, 11\ns_add_u32 s3, s34, %d\ns_add_u32 s34, s34, %d\ns_mov_b32 s62, 0x11111111\ns_mov_b32 s63, 0x11111111" % (P2, P1))
    e("s_mul_i32 s64, s57, %d\ns_lshl_b32 s35, s68, 9\ns_add_u32 s64, s64, s35\ns_bfe_u32 s35, s32, 0x20001\ns_lshl_b32 s35, s35, 7\ns_add_u32 s64, s64, s35\ns_cmp_eq_u32 s31, LIGHT\ns_cselect_b32 s64, 0, s64\ns_cselect_b32 s66, 0, %d" % (16*3584, 15*3584+128))
    e("s_cmp_eq_u32 s30, 7\ns_cselect_b32 s64, 0, s64\ns_cselect_b32 s66, 0, s66\ns_lshl_b32 s58, s30, 11\ns_cselect_b32 s58, %d, s58" .replace("s_lshl_b32 s58, s30, 11\ns_cselect_b32 s58, %d, s58", "s_cselect_b32 s35, %d, 0\ns_lshl_b32 s58, s30, 11\ns_add_u32 s58, s58, s35") % (OB - WG - 7*2048))
    e("s_bitcmp1_b32 s32, 0\ns_cselect_b32 s35, s18, s16\ns_cselect_b32 s65, s19, s17\ns_add_u32 s64, s64, s35\ns_addc_u32 s65, s65, 0\ns_mov_b32 s67, 0x20000\ns_movk_i32 s35, %d" % (8*3584))
    if diag:
        stamp(4); e("s_waitcnt vmcnt(%d)" % fair); stamp(5); e("s_barrier"); stamp(6); e("s_waitcnt vmcnt(%d)" % (fair-1)); stamp(8)
    else: e("s_waitcnt vmcnt(%d)\ns_barrier    ; Bq: wq and x are in LDS" % fair)
    if lw:
        e("s_cmp_ge_u32 s31, %d\ns_cbranch_scc1 L_lateseq" % lset if lset < 8 else "s_lshr_b32 s68, s31, 1\ns_cmp_eq_u32 s68, 2\ns_cbranch_scc1 L_lateseq")
        sv = dict(st)
        while st['nl'] < spos: nextload()
        e("s_branch L_seqdone\nL_lateseq:")
        st.clear(); st.update(sv); st['late'] = True
        while st['nl'] < spos: nextload()
        st['late'] = False
        e("L_seqdone:")
    while st['nl'] < spos: nextload()
    stamp(1)
    e("s_barrier    ; B1 q ready")
    e("ds_read_b128 v[8:11], v105 offset:%d\nds_read_b128 v[12:15], v105 offset:%d\nds_read_b96 v[108:110], v107 offset:%d\nds_read_b32 v87, v107 offset:%d" % (QL, QL+256, GB, GB+12))
    il = min(burst, spos) - 1
    if max(k - win(k) for k in range(il+1)) < 9: e("s_waitcnt vmcnt(%d)" % (st['nl'] - 10))
    if spos >= NL and tailpos == "B1": tail()
    e("s_waitcnt lgkmcnt(2)")
    stamp(2)
    SR=80; DR=88
    for g in range(4):
        e("v_mfma_f32_16x16x32_bf16 v[%d:%d], v[%d:%d], v[8:11], 0" % (DR+4*g, DR+4*g+3, KR+8*g, KR+8*g+3))
        e("v_mfma_f32_16x16x32_bf16 v[%d:%d], v[%d:%d], v[12:15], v[%d:%d]" % (DR+4*g, DR+4*g+3, KR+8*g+4, KR+8*g+7, DR+4*g, DR+4*g+3))
    e("s_waitcnt lgkmcnt(0)\nv_readfirstlane_b32 s57, v110\nv_readfirstlane_b32 s67, v87\nv_mov_b32 v107, 0x3ff")
    for g in range(4):
        if g >= 2: e("s_nop 0")
        e("v_mov_b32_dpp v%d, v%d %s" % (SR+g, DR+4*g, dpp(0)))
    for k in range(1, 4):
        for g in range(4): e("v_add_f32_dpp v%d, v%d, v%d %s" % (SR+g, DR+4*g+k, SR+g, dpp(k)))
    for g in range(4): e("v_cvt_pk_bf16_f32 v%d, v%d, v%d" % (SR+g, SR+g, SR+g))
    for g in range(4): e("v_and_b32 v%d, 0xffff0000, v%d" % (SR+g, SR+g))
    e("v_max3_f32 v84, v80, v81, v82\nv_max_f32 v84, v84, v83")
    e("s_mov_b64 exec, s[60:61]\nds_max_f32 v106, v84 offset:%d\ns_mov_b64 exec, -1\ns_and_b32 s58, s57, 0x3ff" % MB)
    if st['nl'] < NL: nextload()
    if p2pre:
        e("s_cmp_ge_u32 s30, 4\ns_cbranch_scc1 L_nop2pre\ns_xor_b32 s35, s58, 0x3ff\nv_mov_b32 v88, s35\nv_mov_b32 v89, s35\nv_mov_b32 v90, s35\nv_mov_b32 v91, s35\ns_mov_b32 exec_hi, 0\nbuffer_store_dwordx4 v[88:91], v140, s[44:47], s3 offen sc1\ns_mov_b64 exec, -1\nL_nop2pre:")
    e("s_waitcnt lgkmcnt(0)\ns_barrier    ; B2 max ready")
    e("ds_read_b32 v84, v106 offset:%d" % MB)
    if st['nl'] >= NL and tailpos == "B2": tail()
    e("s_waitcnt lgkmcnt(0)\nv_mul_f32 v84, s59, v84")
    for g in range(4): e("v_fma_f32 v%d, v%d, s59, -v84" % (SR+g, SR+g))
    for g in range(4): e("v_exp_f32 v%d, v%d" % (SR+g, SR+g))
    e("s_nop 0\nv_add_f32 v84, v80, v81\nv_add_f32 v85, v82, v83\nv_add_f32 v84, v84, v85")
    e("s_mov_b64 exec, s[60:61]\nds_write_b32 v136, v84 offset:%d\ns_mov_b64 exec, -1" % LB)
    if st['nl'] < NL: nextload()
    for g in range(4): e("v_cvt_pk_bf16_f32 v%d, v%d, v%d" % (SR+g, SR+g, SR+g))
    e("s_waitcnt lgkmcnt(0)\ns_barrier    ; B2b l ready")
    AR=16; OR=32
    for g in range(4):
        for r in range(4): e("v_and_b32 v%d, v%d, v%d" % (AR+4*g+r, SR+g, 4+r))
    while st['nl'] < NL: nextload()
    def pv(extra, tg=None):
        stamp(3)
        for g in range(4):
            if pvs and g == 3:
                e("s_waitcnt vmcnt(%d)" % (1+extra))
                if tg == g: tail_(); extra += 6
                e("v_mfma_f32_16x16x32_bf16 v[32:35], v[28:31], v[72:75], v[32:35]\ns_nop 7\nds_write_b128 v137, v[32:35] offset:%d" % OB)
                e("s_waitcnt vmcnt(%d)\nv_mfma_f32_16x16x32_bf16 v[36:39], v[28:31], v[76:79], v[36:39]" % extra)
                continue
            e("s_waitcnt vmcnt(%d)" % (6+extra-2*g))
            if bt == g: e("s_barrier    ; Bt")
            if tg == g and not tafter: tail_(); extra += 6
            for h in range(2):
                c = "0" if g == 0 else "v[%d:%d]" % (OR+4*h, OR+4*h+3)
                e("v_mfma_f32_16x16x32_bf16 v[%d:%d], v[%d:%d], v[%d:%d], %s" % (OR+4*h, OR+4*h+3, AR+4*g, AR+4*g+3, VR+8*g+4*h, VR+8*g+4*h+3, c))
            if tg == g and tafter:
                if tafter is not True: e("s_nop %d" % tafter)
                tail_(); extra += 6
    e("s_cmp_ge_u32 s30, 4\ns_cbranch_scc1 L_pvhi")
    if tailpos == "C": pv(0)
    elif tailpos[0] == "g": pv(0, int(tailpos[1]))
    else:
        if not st['tail']: tail_()
        pv(6)
    e("s_branch L_pvdone\nL_pvhi:")
    pv(0)
    e("L_pvdone:")
    stamp(4)
    if pvs: e("s_nop 7\nds_write_b128 v137, v[36:39] offset:%d" % (OB+512))
    else: e("s_nop 6\nds_write_b128 v137, v[32:35] offset:%d\nds_write_b128 v137, v[36:39] offset:%d" % (OB, OB+512))
    e("s_waitcnt lgkmcnt(0)\ns_barrier    ; B3")
    stamp(5)
    if red2:
        for k in range(4): e("ds_read2st64_b32 v[%d:%d], v138 offset0:%d offset1:%d" % (16+2*k, 17+2*k, 16*k, 16*k+8))
        e("ds_read_b64 v[56:57], v141 offset:%d\ns_cmp_lg_u32 s67, 0" % HB)
        e("s_waitcnt lgkmcnt(3)\nv_add_f32 v16, v16, v17\nv_add_f32 v18, v18, v19\ns_waitcnt lgkmcnt(1)\nv_add_f32 v20, v20, v21\nv_add_f32 v22, v22, v23\nv_add_f32 v16, v16, v18\nv_add_f32 v20, v20, v22\nv_add_f32 v16, v16, v20\nv_bfi_b32 v16, v107, s58, v16")
        e("s_cbranch_scc1 L_st1far\nbuffer_store_dword v16, v139, s[44:47], s34 offen\ns_branch L_st1done\nL_st1far:\nbuffer_store_dword v16, v139, s[44:47], s34 offen sc1\nL_st1done:")
    else:
        e("ds_read_b128 v[16:19], v138 offset:%d\nds_read_b128 v[20:23], v138 offset:%d\nds_read_b64 v[56:57], v141 offset:%d" % (OB, OB+4*OBS, HB))
        e("s_cmp_lg_u32 s67, 0\ns_waitcnt lgkmcnt(1)")
        for k in range(4): e("v_add_f32 v%d, v%d, v%d" % (16+k, 16+k, 20+k))
        for pm in ("[1,0,3,2]", "[2,3,0,1]"):
            for k in range(4): e("v_add_f32_dpp v%d, v%d, v%d quad_perm:%s %s" % (16+k, 16+k, 16+k, pm, FULL))
        for k in range(4): e("v_bfi_b32 v%d, v107, s58, v%d" % (16+k, 16+k))
        e("s_mov_b64 exec, s[62:63]\ns_cbranch_scc1 L_st1far\nbuffer_store_dwordx4 v[16:19], v139, s[44:47], s34 offen\ns_branch L_st1done")
        e("L_st1far:\nbuffer_store_dwordx4 v[16:19], v139, s[44:47], s34 offen sc1\nL_st1done:\ns_mov_b64 exec, -1")
    stamp(6)
    if b3c: e("s_barrier")
    e("s_cmp_ge_u32 s30, 4\ns_cbranch_scc1 L_kv_hi")
    if tailpos == "C": tail_()
    e("s_waitcnt lgkmcnt(0)")
    for rg in range(2):
        for r in range(4): e("v_and_b32 v%d, v%d, v%d" % (20+4*rg+r, 56+rg, 4+r))
    e("s_waitcnt vmcnt(%d)\nv_mfma_f32_16x16x32_bf16 v[36:39], v[20:23], v[%d:%d], 0\nv_mfma_f32_16x16x32_bf16 v[36:39], v[24:27], v[%d:%d], v[36:39]" % (4 if tailpos == "C" else 5, WDR[0], WDR[0]+3, WDR[1], WDR[1]+3))
    if tailpos == "C": e("s_nop 7")
    else: e("s_waitcnt vmcnt(1)\ns_nop 6")
    stamp(8)
    for k in range(4): e("v_mul_f32 v%d, v109, v%d" % (36+k, 36+k))
    e("s_barrier")
    stamp(10)
    e("ds_read_b128 v[48:51], v141 offset:%d\ns_waitcnt vmcnt(0) lgkmcnt(0)" % CB)
    for rg in range(4):
        for r in range(4): e("v_and_b32 v%d, v%d, v%d" % (52+4*rg+r, 48+rg, 4+r))
        if rg > 0:
            e("v_mfma_f32_16x16x32_bf16 v[32:35], v[%d:%d], v[%d:%d], %s" % (48+4*rg, 51+4*rg, WOR[rg-1], WOR[rg-1]+3, "0" if rg == 1 else "v[32:35]"))
    e("s_nop 0\nv_mfma_f32_16x16x32_bf16 v[32:35], v[64:67], v[%d:%d], v[32:35]" % (WOR[3], WOR[3]+3))
    e("s_mov_b32 exec_hi, 0\ns_nop 6")
    for k in range(4): e("v_fmac_f32 v%d, v108, v%d" % (36+k, 32+k))
    for k in range(4): e("v_bfi_b32 v%d, v107, s58, v%d" % (36+k, 36+k))
    e("buffer_store_dwordx4 v[36:39], v140, s[44:47], s3 offen sc1\ns_mov_b64 exec, -1")
    stamp(11)
    e("s_branch L_hop2")
    e("L_kv_hi:\ns_barrier    ; B4")
    e("L_hop2:")
    if cons == 'late':
        e("s_cmp_eq_u32 s31, 0\ns_cbranch_scc1 L_fin\ns_cmp_ge_u32 s32, 8\ns_cbranch_scc1 L_fin")
        e("s_sub_u32 s35, s31, 1\ns_lshl_b32 s35, s35, 3\ns_add_u32 s35, s35, s32     ; c")
    elif cons == 'no7':
        e("s_cmp_eq_u32 s31, 7\ns_cbranch_scc1 L_fin\ns_cmp_ge_u32 s32, 8\ns_cbranch_scc1 L_fin")
        e("s_lshl_b32 s35, s31, 3\ns_add_u32 s35, s35, s32     ; c")
    elif cons in ('lo4', 'hi4'):
        e("s_xor_b32 s35, s31, %d\ns_lshl_b32 s35, s35, 4\ns_add_u32 s35, s35, s32\ns_cmp_ge_u32 s32, 16\ns_cbranch_scc1 L_fin\ns_cmp_ge_u32 s35, 56\ns_cbranch_scc1 L_fin" % (0 if cons == 'lo4' else 4))
    elif cons == 'two':
        e("s_and_b32 s35, s31, 6\ns_cmp_lg_u32 s35, 4\ns_cbranch_scc1 L_fin\ns_cmp_ge_u32 s32, 28\ns_cbranch_scc1 L_fin")
        e("s_and_b32 s35, s31, 1\ns_mul_i32 s35, s35, 28\ns_add_u32 s35, s35, s32     ; c")
    e("v_lshrrev_b32 v25, 1, v0\nv_lshlrev_b32 v25, 11, v25\nv_and_b32 v26, 1, v0\nv_lshl_add_u32 v25, v26, 4, v25\ns_lshl_b32 s34, s35, 5\ns_add_u32 s34, s34, %d\ns_mov_b32 s68, 0" % P2)
    if p2ack: e("s_waitcnt vmcnt(0)")
    e("s_barrier    ; B5")
    if p2sleep: e("s_sleep %d" % p2sleep)
    if p2dbl:
        def p2l(b): e("buffer_load_dwordx4 v[%d:%d], v25, s[44:47], s34 offen sc1" % (b, b+3))
        def p2c(b, n): e("s_waitcnt vmcnt(%d)\nv_xor_b32 v16, s58, v%d\nv_xor_b32 v17, s58, v%d\nv_xor_b32 v18, s58, v%d\nv_xor_b32 v19, s58, v%d\nv_or3_b32 v20, v16, v17, v18\nv_bitop3_b32 v20, v20, v19, v107 bitop3:0xa8\nv_cmp_ne_u32 vcc, 0, v20\ns_and_b64 exec, exec, vcc\ns_cbranch_execz L_p2ok" % (n, b, b+1, b+2, b+3))
        p2l(28); p2c(28, 0); p2l(28); e("s_sleep %d" % p2dbl); p2l(40)
        e("L_p2:\ns_add_u32 s68, s68, 1"); p2c(28, 1); p2l(28); p2c(40, 1); p2l(40)
        e("s_cmp_lt_u32 s68, %d\ns_cbranch_scc1 L_p2\nL_p2ok:\ns_mov_b64 exec, -1" % SPIN)
    else:
        e("L_p2:\nbuffer_load_dwordx4 %s, v25, s[44:47], s34 offen sc1%s\ns_add_u32 s68, s68, 1\ns_waitcnt vmcnt(0)" % ("v[28:31]" if xorc else "v[16:19]", p2ld))
        if xorc: e("v_xor_b32 v16, s58, v28\nv_xor_b32 v17, s58, v29\nv_xor_b32 v18, s58, v30\nv_xor_b32 v19, s58, v31\nv_or3_b32 v20, v16, v17, v18\nv_bitop3_b32 v20, v20, v19, v107 bitop3:0xa8\nv_cmp_ne_u32 vcc, 0, v20")
        else:
            e("v_bitop3_b32 v20, v16, v17, s58 bitop3:0x7e\nv_bitop3_b32 v21, v18, v19, s58 bitop3:0x7e\nv_bitop3_b32 v20, v20, v21, v107 bitop3:0xa8\nv_cmp_ne_u32 vcc, 0, v20")
        e("s_and_b64 exec, exec, vcc\ns_cbranch_execz L_p2ok\n%ss_cmp_lt_u32 s68, %d\ns_cbranch_scc1 L_p2\nL_p2ok:\ns_mov_b64 exec, -1" % (("s_sleep %d\n" % p2gap) if p2gap else "", SPIN))
    stamp(7)
    if stamps is True: e("s_mov_b32 s96, s68\ns_mov_b32 s97, 0x40000000")
    if not xorc:
        for k in range(4): e("v_and_b32 v%d, 0xfffffc00, v%d" % (16+k, 16+k))
    for pm in ("quad_perm:[2,3,0,1]", "row_ror:4", "row_ror:8"):
        for k in range(4): e("v_add_f32_dpp v%d, v%d, v%d %s %s" % (16+k, 16+k, 16+k, pm, FULL))
    e("v_lshrrev_b32 v27, 4, v1\nv_lshl_add_u32 v27, v26, 2, v27")
    e("v_permlane16_swap_b32 v16, v17\nv_permlane16_swap_b32 v18, v19\nv_lshlrev_b32 v27, 5, v27\nv_add_f32 v16, v16, v17\nv_add_f32 v18, v18, v19\ns_lshl_b32 s64, s30, 2\nv_add_u32 v27, s64, v27")
    e("v_permlane32_swap_b32 v16, v18\ns_mov_b32 s62, 0x00030003\ns_mov_b32 s63, 0x00030003\nv_add_f32 v16, v16, v18")
    e("s_mov_b64 exec, s[62:63]\nds_write_b32 v27, v16 offset:%d\ns_mov_b64 exec, -1\nv_lshlrev_b32 v27, 5, v1\ns_waitcnt lgkmcnt(0)\ns_barrier    ; B6" % FB)
    e("s_cmp_lg_u32 s30, 0\ns_cbranch_scc1 L_fin")
    e("s_mov_b64 exec, 0xff\nds_read_b128 v[16:19], v27 offset:%d\nds_read_b128 v[20:23], v27 offset:%d" % (FB, FB+16))
    e("s_mov_b32 s48, s24\ns_mov_b32 s49, s25\ns_movk_i32 s50, 896\ns_mov_b32 s51, 0x20000\ns_lshl_b32 s34, s35, 4\nv_lshlrev_b32 v27, 1, v1")
    e("s_waitcnt lgkmcnt(0)")
    for k in range(4): e("v_add_f32 v%d, v%d, v%d" % (16+k, 16+k, 20+k))
    e("v_add_f32 v16, v16, v17\nv_add_f32 v18, v18, v19\nv_add_f32 v16, v16, v18\nv_cvt_pk_bf16_f32 v16, v16, v16")
    e("buffer_store_short v16, v27, s[48:51], s34 offen" + outst)
    if not noep: e("s_cmp_lg_u32 s35, 0\ns_cbranch_scc1 L_fin\ns_mov_b64 exec, 1\nv_mov_b32 v17, s57\nv_mov_b32 v18, 0\nbuffer_store_dword v17, v18, s[44:47], 0 offen")
    e("L_fin:")
    if padto:
        if padx is not None: e("s_cmp_lg_u32 s31, %d\ns_cbranch_scc1 L_end" % padx)
        e("L_pad:\ns_memrealtime s[96:97]\ns_waitcnt lgkmcnt(0)\ns_sub_u32 s96, s96, s98\ns_cmp_lt_u32 s96, %d\ns_cbranch_scc1 L_pad" % padto)
    if dbgout:
        e("s_cmp_lg_u32 s30, 0\ns_cbranch_scc1 L_end\ns_cmp_ge_u32 s2, 8\ns_cbranch_scc1 L_end\ns_memrealtime s[96:97]\ns_waitcnt lgkmcnt(0)\ns_mov_b64 exec, 1\ns_lshl_b32 s34, s2, 3\nv_mov_b32 v0, s34\nv_mov_b32 v2, s98\nv_mov_b32 v3, s96\nglobal_store_dwordx2 v0, v[2:3], s[26:27]")
    if stamps:
        stamp(12)
        e("s_cmp_lg_u32 s30, %d\ns_cbranch_scc1 L_end" % sw)
        dump(([(k, k) for k in [0,1,2,3,4,5,6,8,10,11,12]] + ([(9,19),(7,7)] if diag == 2 else [] if qdiag else [(7,7),(13,19)])) if stamps is True else [(0,0),(12,12)], 0)
    e("s_endpgm")
    e("L_helper:")
    if not nearbf:
        for i in range(nbarf): e("s_barrier    ; Bf")
    if diag: stamp(3)
    if hprio: e("s_setprio %d" % hprio)
    if not nearbf: e("s_waitcnt lgkmcnt(0)\ns_load_dword s57, s[28:29], 0")
    e("v_lshlrev_b32 v2, 4, v1      ; l*16")
    e("s_mov_b32 s40, s4\ns_mov_b32 s41, s5\ns_movk_i32 s42, 896\ns_mov_b32 s43, 0x20000\ns_mov_b32 s48, s22\ns_mov_b32 s49, s23\ns_movk_i32 s50, 896\ns_mov_b32 s51, 0x20000")
    if not xlds: e("buffer_load_dwordx4 v[12:15], v2, s[40:43], 0 offen")
    e("buffer_load_dwordx4 v[16:19], v2, s[48:51], 0 offen")
    e("v_mov_b32 v6, 0xff800000\nv_mov_b32 v7, 0xff800000\nv_mov_b32 v4, 0\nds_write_b64 v4, v[6:7] offset:%d" % MB)
    e("s_mov_b32 s44, s28\ns_mov_b32 s45, s29\ns_mov_b32 s46, %d\ns_mov_b32 s47, 0x20000\ns_mov_b32 s55, 0x20000" % WSZ)
    e("s_lshr_b32 s56, s32, 3\ns_bfe_u32 s61, s32, 0x20001\nv_lshlrev_b32 v23, 3, v1")
    e("v_lshrrev_b32 v20, 4, v1\ns_mul_i32 s35, s56, 224\nv_lshlrev_b32 v9, 4, v20\nv_add_u32 v9, s35, v9\nv_lshlrev_b32 v11, 3, v20\nv_add_u32 v11, s35, v11\nv_bfe_u32 v22, v1, 2, 2\nv_and_b32 v21, 3, v1\nv_lshlrev_b32 v8, 2, v21\nv_lshl_add_u32 v8, v20, 4, v8\nv_lshlrev_b32 v21, 3, v21\nv_lshl_add_u32 v21, v22, 7, v21")
    e("v_lshl_add_u32 v10, v20, 10, v21\nv_lshl_add_u32 v21, v20, 9, v21\nv_lshlrev_b32 v38, 2, v1\nv_mov_b32 v39, 0x3ff")
    e("s_mov_b32 s64, 0xffff0000\ns_mov_b32 s65, 0xffff0000\ns_mov_b32 s66, 0\ns_mov_b32 s67, -1")
    e("s_waitcnt lgkmcnt(0)\ns_add_u32 s57, s57, 1\ns_and_b32 s58, s57, 0x3ff\ns_and_b32 s59, s32, 7" + ("\ns_xor_b32 s59, s59, 1" if qsx else ""))
    e("v_xor_b32 v121, %d, v2" % (256 if qsx else 0))
    e("s_lshl_b32 s34, s31, 13\ns_lshl_b32 s35, s56, 11\ns_add_u32 s34, s34, s35\ns_lshl_b32 s35, s59, 8\ns_add_u32 s34, s34, s35\ns_add_u32 s34, s34, %d" % QB)
    e("s_getreg_b32 s68, hwreg(HW_REG_XCC_ID, 0, 4)\ns_lshl_b32 s68, s68, 16\ns_or_b32 s68, s68, s58\nv_mov_b32 v7, s68\ns_lshl_b32 s36, s33, %d\ns_add_u32 s36, s36, %d" % (xis, XI if xis == 2 else 0x30000))
    def prer():
        e("s_lshl_b32 s62, s33, 11\ns_add_u32 s62, s62, %d\ns_lshl_b32 s63, s31, 9\ns_add_u32 s63, s63, %d" % (P1, ST))
        if pre2 is not None: e("s_add_u32 s37, s62, %d\nbuffer_load_dwordx4 v[124:127], v2, s[44:47], s37 offen%s\nbuffer_load_dwordx4 v[124:127], v2, s[44:47], s37 offen offset:1024%s" % (P2-P1, pre2, pre2))
        e("buffer_load_dwordx4 v[124:127], v2, s[44:47], s62 offen%s\nbuffer_load_dwordx4 v[124:127], v2, s[44:47], s62 offen offset:1024%s\nbuffer_load_dwordx2 v[124:125], v23, s[44:47], s63 offen%s" % (pre, pre, pre))
    if pre is not None and prepos == 'early': prer()
    XF=24
    if diag: stamp(4)
    e("s_barrier    ; Bq")
    for t in range(3): e("ds_read_b128 v[%d:%d], v9 offset:%d" % (XF+4*t, XF+4*t+3, XB+t*64))
    e("ds_read_b64 v[36:37], v11 offset:%d" % (XB+192))
    if xlds: e("ds_read_b128 v[12:15], v2 offset:%d" % XB)
    BF=88; AC=40
    def gemv(base, waitfn):
        def rd(t):
            if waitfn: e("s_waitcnt vmcnt(%d)" % waitfn(min(4*t+3, 13)))
            for n in range(4):
                b = BF+16*(t%2)+4*n
                if t < 3: e("ds_read_b64_tr_b16 v[%d:%d], v10 offset:%d\nds_read_b64_tr_b16 v[%d:%d], v10 offset:%d" % (b, b+1, base+t*4096+n*32, b+2, b+3, base+t*4096+n*32+512))
                else: e("ds_read_b64_tr_b16 v[%d:%d], v21 offset:%d" % (b, b+1, base+3*4096+n*32))
        rd(0)
        for t in range(4):
            if t < 3: rd(t+1)
            e("s_waitcnt lgkmcnt(%d)" % (8 if t < 2 else 4 if t == 2 else 0))
            for n in range(4):
                b = BF+16*(t%2)+4*n; a = AC+4*n
                if t < 3: e("v_mfma_f32_16x16x32_bf16 v[%d:%d], v[%d:%d], v[%d:%d], %s" % (a, a+3, XF+4*t, XF+4*t+3, b, b+3, "0" if t == 0 else "v[%d:%d]" % (a, a+3)))
                else: e("v_mfma_f32_16x16x16_bf16 v[%d:%d], v[36:37], v[%d:%d], v[%d:%d]" % (a, a+3, b, b+1, a, a+3))
    def select():
        e("s_nop 5\nv_cndmask_b32 v40, v40, v44, s[64:65]\ns_nop 0\nv_cndmask_b32 v48, v48, v52, s[64:65]\nv_cndmask_b32 v40, v40, v48, s[66:67]\nv_bfi_b32 v40, v39, s58, v40")
    gemv(WQ, None)
    select()
    if "s" in abl: e("s_mov_b32 s37, 0x7f000000\nbuffer_store_dword v40, v38, s[44:47], s37 offen\nbuffer_store_dword v40, v38, s[44:47], s37 offen")
    else:
        e("buffer_store_dword v40, v38, s[44:47], s34 offen sc1")
        if "x" in abl: e("s_mov_b32 s37, 0x7f000000\nbuffer_store_dword v40, v38, s[44:47], s37 offen")
        else: e("s_mov_b64 exec, 1\nbuffer_store_dword v7, v4, s[44:47], s36 offen sc1\ns_mov_b64 exec, -1")
    stamp(1)
    e("s_waitcnt vmcnt(2)\nv_mov_b32 v20, 0")
    for k in range(4):
        e("v_lshlrev_b32 v41, 16, v%d\nv_and_b32 v42, 0xffff0000, v%d\nv_lshlrev_b32 v43, 16, v%d\nv_and_b32 v44, 0xffff0000, v%d" % (12+k, 12+k, 16+k, 16+k))
        e("v_mul_f32 v41, v41, v43\nv_mul_f32 v42, v42, v44\nv_cvt_pk_bf16_f32 v41, v41, v42\nv_lshlrev_b32 v42, 16, v41\nv_and_b32 v41, 0xffff0000, v41\nv_add_f32 v20, v20, v42\nv_add_f32 v20, v20, v41")
    for pm in ("quad_perm:[1,0,3,2] row_mask:0xf", "quad_perm:[2,3,0,1] row_mask:0xf", "row_ror:4 row_mask:0xf", "row_ror:8 row_mask:0xf", "row_bcast:15 row_mask:0xa", "row_bcast:31 row_mask:0xc"):
        e("s_nop 1\nv_add_f32_dpp v20, v20, v20 %s bank_mask:0xf" % pm)
    e("s_nop 0\nv_readlane_b32 s35, v20, 63\ns_lshl_b32 s34, s31, 13\ns_add_u32 s34, s34, %d\nv_mov_b32 v12, s35" % QB)
    e("s_add_u32 s35, s34, 4096\ns_lshl_b32 s69, s31, %d\ns_add_u32 s69, s69, %d\nv_and_b32 v22, 31, v1\nv_lshlrev_b32 v22, %d, v22" % (5+xis, XI if xis == 2 else 0x30000, xis))
    e("v_cvt_pk_bf16_f32 v12, v12, v12\nv_and_b32 v12, 0xffff0000, v12\nv_mul_f32 v12, %s, v12\nv_exp_f32 v12, v12\ns_nop 0\nv_add_f32 v12, 1.0, v12\nv_rcp_f32 v12, v12\ns_nop 0" % fhex(NL2E))
    e("v_cvt_pk_bf16_f32 v12, v12, v12\nv_and_b32 v12, 0xffff0000, v12\nv_sub_f32 v13, 1.0, v12\nv_cvt_pk_bf16_f32 v13, v13, v13\nv_and_b32 v13, 0xffff0000, v13\nv_mov_b32 v14, s57")
    QG=56
    def pollq():
        if "q" in abl:
            e("buffer_load_dword v6, v22, s[44:47], s69 offen sc1" + qld); return
        for rb in range(4):
            for hf in range(2):
                e("buffer_load_dwordx4 v[%d:%d], v121, s[44:47], %s offen offset:%d sc1%s" % (QG+8*rb+4*hf, QG+8*rb+4*hf+3, "s35" if rb >= 2 else "s34", (rb%2)*2048+hf*1024, qld))
        e("buffer_load_dword v6, v22, s[44:47], s69 offen sc1" + qld)
    e("s_barrier    ; Bg")
    if qdiag: stamp(6)
    if not qafter: pollq()
    gemv(WG, None)
    e("s_lshl_b32 s3, s31, 13\ns_and_b32 s60, s32, 1\ns_lshl_b32 s60, s60, 12\ns_add_u32 s3, s3, s60\ns_lshl_b32 s60, s56, 10\ns_add_u32 s3, s3, s60\ns_lshl_b32 s60, s61, 8\ns_add_u32 s3, s3, s60\ns_add_u32 s3, s3, %d" % GU)
    select()
    e("buffer_store_dword v40, v38, s[44:47], s37 offen" if "s" in abl else "buffer_store_dword v40, v38, s[44:47], s3 offen sc1")
    stamp(3)
    if qafter: pollq()
    if pre is not None and prepos == 'mid': prer()
    def setup2():
        e("v_bfe_u32 v20, v1, 3, 1\nv_lshlrev_b32 v122, 12, v20\nv_and_b32 v20, 3, v1\nv_lshl_add_u32 v122, v20, 10, v122\nv_bfe_u32 v20, v1, 2, 1\nv_lshl_add_u32 v122, v20, 4, v122\nv_lshlrev_b32 v20, 2, v20")
        e("s_lshl_b32 s37, s31, 13\ns_lshl_b32 s36, s32, 5\ns_add_u32 s37, s37, s36\ns_add_u32 s37, s37, %d" % GU)
        e("s_lshl_b32 s54, s33, 4\ns_add_u32 s54, s54, %d\nv_and_b32 v21, 1, v1\nv_lshlrev_b32 v21, 2, v21\ns_nop 0" % ST)
        e("v_lshrrev_b32 v10, 2, v1\nv_lshlrev_b32 v9, 11, v10\nv_and_b32 v11, 3, v1\nv_lshl_add_u32 v9, v11, 4, v9\nv_lshlrev_b32 v10, 4, v10")
        e("s_lshl_b32 s65, s31, 16\ns_lshl_b32 s66, s32, 6\ns_add_u32 s65, s65, s66\ns_add_u32 s65, s65, %d\ns_add_u32 s66, s65, 0x8000" % P1)
        e("s_lshl_b32 s64, s31, 9\ns_add_u32 s64, s64, %d\ns_mov_b32 s59, %s\ns_cmp_ge_u32 s32, 16\ns_cselect_b64 s[42:43], -1, 0" % (ST, fhex(CEXP)))
    if hoist: setup2()
    e("s_mov_b32 s63, 0\ns_waitcnt vmcnt(%d)\ns_branch L_pq1" % ((0 if qafter else 1) + (0 if (pre is None or prepos != 'mid') else 3 + (0 if pre2 is None else 2))))
    e("L_pq:\ns_waitcnt vmcnt(0)\nL_pq1:\n%sv_xor_b32 v16, s58, v6" % ("v_mov_b32 v6, s68\n" if "x" in abl else ""))
    if qx:
        for i in range(32): e("v_xor_b32 v%d, s58, v%d" % (88+i, QG+i))
        for i in range(16): e("v_or3_b32 v16, v16, v%d, v%d" % (88+2*i, 89+2*i))
        e("v_and_b32 v16, v16, v39\nv_cmp_ne_u32 vcc, 0, v16")
    else:
        for i in range(0 if "q" in abl else 8):
            e("v_bitop3_b32 v17, v%d, v%d, s58 bitop3:0x7e\nv_bitop3_b32 v18, v%d, v%d, s58 bitop3:0x7e\nv_or3_b32 v16, v16, v17, v18" % (QG+4*i, QG+4*i+1, QG+4*i+2, QG+4*i+3))
        e("v_and_b32 v16, v16, v39\nv_cmp_ne_u32 vcc, 0, v16")
    if "s" in abl: e("v_mov_b32 v6, s68\ns_branch L_pqok")
    e("s_cbranch_vccz L_pqok\ns_add_u32 s63, s63, 1\ns_cmp_ge_u32 s63, %d\ns_cbranch_scc1 L_pqok" % SPIN)
    pollq()
    e("s_branch L_pq\nL_pqok:")
    if qdiag: e("s_mov_b32 s84, s63\ns_mov_b32 s85, 0x40000000")
    if not hoist: setup2()
    if qx:
        for i in range(8): e("v_add_f32 v%d, v%d, v%d\nv_add_f32 v%d, v%d, v%d\nv_add_f32 v%d, v%d, v%d" % (QG+i, 88+i, 96+i, QG+16+i, 104+i, 112+i, QG+i, QG+i, QG+16+i))
    else:
        for i in range(32): e("v_and_b32 v%d, 0xfffffc00, v%d" % (QG+i, QG+i))
        for i in range(8): e("v_add_f32 v%d, v%d, v%d\nv_add_f32 v%d, v%d, v%d\nv_add_f32 v%d, v%d, v%d" % (QG+i, QG+i, QG+8+i, QG+16+i, QG+16+i, QG+24+i, QG+i, QG+i, QG+16+i))
    for i in range(4): e("v_cvt_pk_bf16_f32 v%d, v%d, v%d" % (QG+i, QG+2*i, QG+2*i+1))
    e("ds_write_b64 v23, v[%d:%d] offset:%d\nds_write_b64 v23, v[%d:%d] offset:%d" % (QG, QG+1, QL, QG+2, QG+3, QL+512))
    if fast: e("v_cmp_ne_u32 vcc, s68, v6\ns_cmp_lg_u64 vcc, 0\ns_cselect_b32 s60, 1, 0\nv_mov_b32 v15, s60")
    else: e("s_mov_b32 s60, 1\nv_mov_b32 v15, 1")
    e("ds_write_b128 v4, v[12:15] offset:%d" % GB)
    def pollg(): e("buffer_load_dwordx4 v[24:27], v122, s[44:47], s37 offen sc1" + qld)
    def gucheck():
        e("v_bitop3_b32 v17, v24, v25, s58 bitop3:0x7e\nv_bitop3_b32 v18, v26, v27, s58 bitop3:0x7e\nv_bitop3_b32 v17, v17, v18, v39 bitop3:0xa8\nv_cmp_ne_u32 vcc, 0, v17")
        if "s" in abl: e("s_mov_b64 vcc, 0")
    pollg()
    e("s_mov_b32 s63, 0")
    stamp(2)
    e("s_waitcnt lgkmcnt(0)\ns_barrier    ; B1")
    def hcomp():
        for k in range(4): e("v_and_b32 v%d, 0xfffffc00, v%d" % (24+k, 24+k))
        for pm in ("[1,0,3,2]", "[2,3,0,1]"):
            for k in range(4): e("v_add_f32_dpp v%d, v%d, v%d quad_perm:%s %s" % (24+k, 24+k, 24+k, pm, FULL))
        for k in range(4): e("v_cvt_pk_bf16_f32 v%d, v%d, v%d" % (24+k, 24+k, 24+k))
        for k in range(4): e("v_and_b32 v%d, 0xffff0000, v%d" % (24+k, 24+k))
        for k in range(4): e("v_mul_f32 v%d, %s, v%d" % (28+k, fhex(NL2E), 24+k))
        for k in range(4): e("v_exp_f32 v%d, v%d" % (28+k, 28+k))
        for k in range(4): e("v_mov_b32_dpp v%d, v%d row_ror:8 %s" % (32+k, 24+k, FULL))
        for k in range(4): e("v_add_f32 v%d, 1.0, v%d" % (28+k, 28+k))
        for k in range(4): e("v_rcp_f32 v%d, v%d" % (28+k, 28+k))
        for k in range(4): e("v_mul_f32 v%d, v%d, v%d" % (28+k, 24+k, 28+k))
        for k in range(4): e("v_cvt_pk_bf16_f32 v%d, v%d, v%d" % (28+k, 28+k, 28+k))
        for k in range(4): e("v_and_b32 v%d, 0xffff0000, v%d" % (28+k, 28+k))
        for k in range(4): e("v_mul_f32 v%d, v%d, v%d" % (28+k, 28+k, 32+k))
        for k in range(4): e("v_cvt_pk_bf16_f32 v%d, v%d, v%d" % (28+k, 28+k, 28+k))
        e("s_mov_b64 exec, 0x11")
        for k in range(4): e("ds_write_b32 v20, v%d offset:%d" % (28+k, HB+16*k))
        e("s_mov_b64 exec, -1")
    if hlate: e("s_barrier    ; B2\ns_barrier    ; B2b")
    else:
        e("s_waitcnt vmcnt(0)")
        gucheck()
        e("s_mov_b32 s62, 1\ns_cbranch_vccz L_g1\ns_mov_b32 s62, 0")
        pollg()
        e("s_branch L_g2\nL_g1:")
        hcomp()
        e("L_g2:\ns_barrier    ; B2\ns_barrier    ; B2b")
    e("ds_read_b32 v17, v38 offset:%d\nds_read_b32 v16, v21 offset:%d\ns_cmp_lg_u32 s60, 0\ns_waitcnt lgkmcnt(0)" % (LB, MB))
    for pm in ("quad_perm:[2,3,0,1]", "row_ror:4", "row_ror:8"):
        e("v_add_f32_dpp v17, v17, v17 %s %s\ns_nop 1" % (pm, FULL))
    e("v_mov_b32 v18, v17\nv_bfi_b32 v16, v39, s58, v16\ns_nop 0\nv_permlane16_swap_b32 v17, v18\nv_add_f32 v17, v17, v18\nv_mov_b32 v18, v17\ns_nop 1\nv_permlane32_swap_b32 v17, v18\nv_add_f32 v17, v17, v18")
    if satom:
        e("v_bfi_b32 v17, v39, s58, v17\ns_nop 0\nv_readlane_b32 s40, v16, 0\nv_readlane_b32 s41, v17, 0\nv_readlane_b32 s48, v16, 1\nv_readlane_b32 s49, v17, 1\ns_cbranch_scc1 L_stsfar")
        e("s_add_u32 s50, s28, s34\ns_addc_u32 s51, s29, 0\ns_atomic_swap_x2 s[40:41], s[50:51], 0\ns_atomic_swap_x2 s[48:49], s[50:51], 8\ns_mov_b32 s37, 0x7f000000\nbuffer_store_dword v16, v23, s[44:47], s37 offen\ns_branch L_stsdone")
        e("L_stsfar:\ns_mov_b64 exec, 3\nbuffer_store_dwordx2 v[16:17], v23, s[44:47], s54 offen sc1\ns_mov_b64 exec, -1\nL_stsdone:")
        e("s_and_b32 s38, s32, 15\ns_lshl_b32 s38, s38, 2\ns_lshl_b64 s[38:39], 15, s38")
    else:
        e("v_bfi_b32 v17, v39, s58, v17\ns_mov_b64 exec, 3\ns_cbranch_scc1 L_stsfar\nbuffer_store_dwordx2 v[16:17], v23, s[44:47], s54 offen\ns_branch L_stsdone\nL_stsfar:\nbuffer_store_dwordx2 v[16:17], v23, s[44:47], s54 offen sc1\nL_stsdone:\ns_mov_b64 exec, -1")
        if own: e("s_and_b32 s38, s32, 15\ns_lshl_b32 s38, s38, 2\ns_lshl_b64 s[38:39], 15, s38\nv_readlane_b32 s40, v16, 0\nv_readlane_b32 s41, v17, 0\nv_readlane_b32 s48, v16, 1\nv_readlane_b32 s49, v17, 1")
    if not hlate: e("s_cmp_lg_u32 s62, 0\ns_cbranch_scc1 L_hdone")
    e("s_waitcnt vmcnt(1)\ns_branch L_pg1\nL_pg:\ns_waitcnt vmcnt(0)\nL_pg1:")
    gucheck()
    e("s_cbranch_vccz L_pgok\ns_add_u32 s63, s63, 1\ns_cmp_ge_u32 s63, %d\ns_cbranch_scc1 L_pgok" % SPIN)
    pollg()
    e("s_branch L_pg\nL_pgok:")
    hcomp()
    e("L_hdone:")
    e("s_mov_b64 exec, -1\ns_mov_b32 s63, 0")
    def polls(): e("buffer_load_dwordx4 v[56:59], v10, s[44:47], s64 offen sc1%s\nbuffer_load_dwordx4 v[60:63], v10, s[44:47], s64 offen offset:256 sc1%s" % (p1ld, p1ld))
    def pollo(b=48): e("buffer_load_dwordx4 v[%d:%d], v9, s[44:47], s65 offen sc1%s\nbuffer_load_dwordx4 v[%d:%d], v9, s[44:47], s66 offen sc1%s" % (b, b+3, p1ld, b+4, b+7, p1ld))
    if ack: e("s_waitcnt vmcnt(0)")
    if bt is not None: e("s_barrier    ; Bt")
    polls()
    if pre2bt is not None: e("s_lshl_b32 s37, s33, 11\ns_add_u32 s37, s37, %d\nbuffer_load_dwordx4 v[124:127], v2, s[44:47], s37 offen%s\nbuffer_load_dwordx4 v[124:127], v2, s[44:47], s37 offen offset:1024%s" % (P2, pre2bt, pre2bt))
    e("s_waitcnt lgkmcnt(0)")
    stamp(4)
    e("s_barrier    ; B3\ns_mov_b32 s61, 0")
    if own: e("s_waitcnt vmcnt(PRE2N)\ns_mov_b64 exec, s[38:39]\ns_cmp_ge_u32 s32, 16\ns_cbranch_scc1 L_ownhi\nv_mov_b32 v56, s40\nv_mov_b32 v57, s41\nv_mov_b32 v58, s48\nv_mov_b32 v59, s49\ns_mov_b64 exec, -1\ns_branch L_ps2\nL_ownhi:\nv_mov_b32 v60, s40\nv_mov_b32 v61, s41\nv_mov_b32 v62, s48\nv_mov_b32 v63, s49\ns_mov_b64 exec, -1")
    e("s_branch L_ps2\nL_ps:")
    polls()
    if tailpos == "C": pass
    elif b3c:
        e("s_cmp_lg_u32 s61, 0\ns_cbranch_scc1 L_ps1\ns_mov_b64 s[36:37], exec\ns_mov_b64 exec, -1\ns_barrier    ; B3c")
        pollo()
        e("s_mov_b64 exec, s[36:37]\ns_mov_b32 s61, 1")
    else:
        e("s_mov_b64 s[36:37], exec\ns_mov_b64 exec, -1")
        pollo()
        e("s_mov_b64 exec, s[36:37]\ns_mov_b32 s61, 1")
    e("L_ps1:\ns_add_u32 s63, s63, 1\ns_waitcnt vmcnt(0)\nL_ps2:")
    e("v_bitop3_b32 v17, v56, v57, s58 bitop3:0x7e\nv_bitop3_b32 v18, v58, v59, s58 bitop3:0x7e\nv_bitop3_b32 v19, v60, v61, s58 bitop3:0x7e\nv_bitop3_b32 v16, v62, v63, s58 bitop3:0x7e\nv_or3_b32 v17, v17, v18, v19\nv_bitop3_b32 v17, v17, v16, v39 bitop3:0xa8\nv_cmp_ne_u32 vcc, 0, v17")
    e("s_and_b64 exec, exec, vcc\ns_cbranch_execz L_psok\ns_cmp_lt_u32 s63, %d\ns_cbranch_scc1 L_ps\nL_psok:\ns_mov_b64 exec, -1" % SPIN)
    def ocheck(w, b=48, n=0):
        if w: e("s_waitcnt vmcnt(%d)" % (n+1))
        for k in range(4): e("v_xor_b32 v%d, s58, v%d" % (64+k, b+k))
        e("v_or3_b32 v17, v64, v65, v66")
        if w: e("s_waitcnt vmcnt(%d)" % n)
        for k in range(4): e("v_xor_b32 v%d, s58, v%d" % (68+k, b+4+k))
        e("v_or3_b32 v17, v17, v67, v68\nv_or3_b32 v17, v17, v69, v70\nv_bitop3_b32 v17, v17, v71, v39 bitop3:0xa8\nv_cmp_ne_u32 vcc, 0, v17")
    if ovl:
        assert xorc and not b3c
        e("s_mov_b64 s[36:37], -1\ns_cmp_eq_u32 s61, 0\ns_cbranch_scc1 L_po0")
        ocheck(False)
        e("s_and_b64 s[36:37], vcc, vcc\ns_cbranch_scc0 L_po1\ns_mov_b64 exec, s[36:37]\nL_po0:")
        pollo()
        e("s_mov_b64 exec, -1\nL_po1:")
    e("v_cndmask_b32 v28, v56, v58, s[42:43]\nv_cndmask_b32 v30, v60, v62, s[42:43]\nv_cndmask_b32 v29, v57, v59, s[42:43]\nv_cndmask_b32 v31, v61, v63, s[42:43]")
    e("v_and_b32 v28, 0xfffffc00, v28\nv_and_b32 v30, 0xfffffc00, v30\nv_max_f32 v32, v28, v30\nv_and_b32 v29, 0xfffffc00, v29\nv_and_b32 v31, 0xfffffc00, v31")
    for pm in ("row_ror:4 row_mask:0xf", "row_ror:8 row_mask:0xf", "row_bcast:15 row_mask:0xa", "row_bcast:31 row_mask:0xc"):
        e("v_max_f32_dpp v32, v32, v32 %s bank_mask:0xf\ns_nop 1" % pm)
    if not b3c and not ovl:
        e("s_cmp_lg_u32 s61, 0\ns_cbranch_scc1 L_po1")
        pollo()
        e("L_po1:")
    e("v_readlane_b32 s69, v32, 63\ns_mov_b32 s62, 0x000f000f\ns_mov_b32 s56, 0")
    e("v_subrev_f32 v28, s69, v28\nv_subrev_f32 v30, s69, v30\nv_mul_f32 v28, s59, v28\nv_mul_f32 v30, s59, v30\nv_exp_f32 v28, v28\nv_exp_f32 v30, v30\ns_mov_b32 s63, s62")
    e("v_mul_f32 v29, v28, v29\nv_fmac_f32 v29, v30, v31\ns_nop 1")
    for pm in ("row_ror:4 row_mask:0xf", "row_ror:8 row_mask:0xf", "row_bcast:15 row_mask:0xa", "row_bcast:31 row_mask:0xc"):
        e("v_add_f32_dpp v29, v29, v29 %s bank_mask:0xf\ns_nop 1" % pm)
    e("v_readlane_b32 s69, v29, 63\ns_nop 1\nv_rcp_f32 v29, s69\ns_nop 0\nv_mul_f32 v28, v28, v29\nv_mul_f32 v30, v30, v29")
    stamp(5)
    if b3c:
        e("s_cmp_lg_u32 s61, 0\ns_cbranch_scc1 L_p1c\ns_barrier    ; B3c")
        if p1delay: e("s_sleep %d" % p1delay)
    elif ovl: e("s_and_b64 exec, s[36:37], s[36:37]\ns_cbranch_scc0 L_p1ok" + ("" if dbl else "\ns_branch L_p1c"))
    else: e("s_branch L_p1c")
    if dbl:
        e("L_p1c:")
        pollo(72)
        e("L_p1:\ns_add_u32 s56, s56, 1")
        ocheck(True, 48, 2)
        e("s_and_b64 exec, exec, vcc\ns_cbranch_execz L_p1ok")
        pollo(48)
        ocheck(True, 72, 2)
        e("s_and_b64 exec, exec, vcc\ns_cbranch_execz L_p1ok")
        pollo(72)
        e("s_cmp_lt_u32 s56, %d\ns_cbranch_scc1 L_p1\nL_p1ok:\ns_mov_b64 exec, -1" % SPIN)
    else:
        e("L_p1:")
        pollo()
        if xorc:
            e("L_p1c:\ns_add_u32 s56, s56, 1\ns_waitcnt vmcnt(1)")
            for k in range(4): e("v_xor_b32 v%d, s58, v%d" % (64+k, 48+k))
            e("v_or3_b32 v17, v64, v65, v66\ns_waitcnt vmcnt(0)")
            for k in range(4): e("v_xor_b32 v%d, s58, v%d" % (68+k, 52+k))
            e("v_or3_b32 v17, v17, v67, v68\nv_or3_b32 v17, v17, v69, v70\nv_bitop3_b32 v17, v17, v71, v39 bitop3:0xa8\nv_cmp_ne_u32 vcc, 0, v17")
        else:
            e("L_p1c:\ns_add_u32 s56, s56, 1\ns_waitcnt vmcnt(1)\nv_bitop3_b32 v17, v48, v49, s58 bitop3:0x7e\nv_bitop3_b32 v18, v50, v51, s58 bitop3:0x7e\ns_waitcnt vmcnt(0)\nv_bitop3_b32 v19, v52, v53, s58 bitop3:0x7e\nv_bitop3_b32 v16, v54, v55, s58 bitop3:0x7e")
            e("v_or3_b32 v17, v17, v18, v19\nv_bitop3_b32 v17, v17, v16, v39 bitop3:0xa8\nv_cmp_ne_u32 vcc, 0, v17")
        e("s_and_b64 exec, exec, vcc\ns_cbranch_execz L_p1ok")
        if p1sleep: e("s_sleep %d" % p1sleep)
        e("s_cmp_lt_u32 s56, %d\ns_cbranch_scc1 L_p1\nL_p1ok:\ns_mov_b64 exec, -1" % SPIN)
    stamp(9)
    if not xorc:
        for k in range(8): e("v_and_b32 v%d, 0xfffffc00, v%d" % (48+k, 48+k))
    sb = 64 if xorc else 48
    for k in range(4): e("v_mul_f32 v%d, v28, v%d" % (32+k, sb+k))
    for k in range(4): e("v_fmac_f32 v%d, v30, v%d" % (32+k, sb+4+k))
    for ro in (4, 8):
        for rr in (32, 33, 34, 35): e("v_add_f32_dpp v%d, v%d, v%d row_ror:%d %s" % (rr, rr, rr, ro, FULL))
    e("s_nop 0\nv_permlane16_swap_b32 v32, v33\nv_permlane16_swap_b32 v34, v35\nv_add_f32 v32, v32, v33\nv_add_f32 v34, v34, v35\ns_nop 1")
    e("v_permlane32_swap_b32 v32, v34\nv_add_f32 v32, v32, v34\nv_cvt_pk_bf16_f32 v32, v32, v32")
    e("s_mov_b64 exec, s[62:63]\nds_write_b32 v8, v32 offset:%d\ns_waitcnt lgkmcnt(0)\ns_barrier    ; B4" % CB)
    if stamps is True:
        e("s_mov_b32 s96, s56\ns_mov_b32 s97, 0x40000000")
        dump([(1,14),(2,15),(3,16),(4,17),(5,18),(9,9),(13,13)] + ([(6,7),(7,19)] if qdiag else []), 0)
    e("L_end:\ns_endpgm")
    e(footer(152 if latin else 144, 102))
    txt = "\n".join(o).replace("NEARBF", ("s_waitcnt lgkmcnt(0)\ns_load_dword s57, s[28:29], 0\n" + "s_barrier    ; Bf\n"*nbarf) if nearbf else "").replace("PRE2N", "0" if pre2bt is None else "2").replace("LIGHT", str(light)).replace("KPERM", str(kperm))
    if qperm: txt = txt.replace("s_and_b32 s35, s32, 7\n", "s_and_b32 s35, s32, 7\ns_xor_b32 s35, s35, %d\n" % qperm).replace("s_and_b32 s59, s32, 7\n", "s_and_b32 s59, s32, 7\ns_xor_b32 s59, s59, %d\n" % qperm)
    if gmap == 1:
        txt = txt.replace("s32, 0x20001", "s32, 0x20000").replace("s_bitcmp1_b32 s32, 0", "s_bitcmp1_b32 s32, 2").replace("s_and_b32 s60, s32, 1", "s_bfe_u32 s60, s32, 0x10002")
    nb = hazard.check(txt)
    if nb: print("HAZARDS", nb)
    return txt
def main(cfgs, gen):
    for n, c in cfgs.items():
        la = build(gen(**c), n); la = build(gen(stamps=True, **c), n+"s"); la = build(gen(stamps="light", **c), n+"l")
    print(" ".join(f'"dev/{n}l.co",' for n in cfgs)); print(" ".join(f'"dev/{n}s.co",' for n in cfgs))
    open("mrun.sh", "w").write(2*("REALLOC=10 ./mbench 250 267 0 " + " ".join(f"{n}l:256:576:{c.get('lds', LDSZ)}:20" for n, c in cfgs.items()) + "\n") + "REALLOC=4 ./mbench 16 267 1 " + " ".join(f"{n}s:256:576:{c.get('lds', LDSZ)}:20" for n, c in cfgs.items()) + "\n")
if __name__ == "__main__":
    main(eval(sys.argv[1]), gen)
```

```python
import re, sys
def regs(tok):
    tok = tok.strip()
    neg = tok.lstrip('-').replace('abs(', '').rstrip(')')
    m = re.fullmatch(r'([vsa])(\d+)', neg)
    if m: return {(m.group(1), int(m.group(2)))}
    m = re.fullmatch(r'([vsa])\[(\d+):(\d+)\]', neg)
    if m: return {(m.group(1), i) for i in range(int(m.group(2)), int(m.group(3))+1)}
    if neg in ('vcc',): return {('s', 106), ('s', 107)}
    if neg == 'vcc_lo': return {('s', 106)}
    if neg == 'vcc_hi': return {('s', 107)}
    if neg == 'exec': return {('s', 126), ('s', 127)}
    if neg == 'm0': return {('s', 124)}
    return set()
TRANS = ('v_exp_f32','v_log_f32','v_rcp_f32','v_rsq_f32','v_sqrt_f32','v_sin_f32','v_cos_f32')
def parse(line):
    line = line.split(';')[0].strip()
    if not line or line.endswith(':') or line.startswith('.'): return None
    parts = line.split(None, 1)
    mn = parts[0]; rest = parts[1] if len(parts) > 1 else ''
    ops = [x.strip() for x in re.split(r',\s*(?![^\[]*\])', rest)] if rest else []
    mods = ''
    if ops:
        l = ops[-1].split(None, 1)
        ops[-1] = l[0]; mods = l[1] if len(l) > 1 else ''
    return mn, ops, mods
def classify(mn, ops, mods):
    I = dict(mn=mn, valu=False, mfma=False, vmem=False, ds=False, salu=False, dpp=False, perml=False, trans=False, rl=False, w=set(), r=set(), srcc=set(), ab=set(), wide=set(), ldsdma=False)
    if mn.startswith('v_mfma'):
        I['mfma'] = True; I['w'] = regs(ops[0]); I['ab'] = regs(ops[1]) | regs(ops[2]); I['srcc'] = regs(ops[3]); I['r'] = I['ab'] | I['srcc']
        I['passes'] = 4 if '16x16x' in mn else 8
    elif mn.startswith('v_'):
        I['valu'] = True
        base = re.sub(r'_(e32|e64|dpp|sdwa)$', '', mn)
        I['dpp'] = 'quad_perm' in mods or 'row_' in mods or mn.endswith('_dpp')
        I['trans'] = base in TRANS
        if base.startswith('v_permlane'):
            I['perml'] = True; I['w'] = regs(ops[0]) | regs(ops[1]); I['r'] = set(I['w'])
        elif base.startswith('v_cmp'):
            I['w'] = regs(ops[0]); I['r'] = set().union(*[regs(x) for x in ops[1:]])
            if base.startswith('v_cmpx'): I['w'] |= regs('exec')
        elif base in ('v_readfirstlane_b32', 'v_readlane_b32'):
            I['rl'] = True; I['w'] = regs(ops[0]); I['r'] = set().union(*[regs(x) for x in ops[1:]])
        elif base in ('v_add_co_u32','v_sub_co_u32','v_addc_co_u32','v_subb_co_u32'):
            I['w'] = regs(ops[0]) | regs(ops[1]); I['r'] = set().union(*[regs(x) for x in ops[2:]])
        else:
            I['w'] = regs(ops[0]); I['r'] = set().union(*[regs(x) for x in ops[1:]]) if len(ops) > 1 else set()
            if base in ('v_fmac_f32','v_dot2c_f32_bf16','v_writelane_b32') or (I['dpp'] and 'row_mask:0xf' not in mods): I['r'] |= I['w']
    elif mn.startswith(('buffer_', 'global_', 'flat_')):
        I['vmem'] = True
        if mn.startswith(('buffer_inv','buffer_wbl2')): return I
        lds = 'lds' in mods.split() or '_lds_' in mn
        I['ldsdma'] = lds
        allr = [regs(x) for x in ops]
        if 'load' in mn and not lds:
            I['w'] = allr[0]; I['r'] = set().union(*allr[1:])
        else:
            I['r'] = set().union(*allr)
            if 'store' in mn and ('x4' in mn or 'x3' in mn):
                I['wide'] = allr[0] if mn.startswith('buffer_') else allr[1]
            if 'atomic' in mn and 'sc0' in mods: I['w'] = allr[0]
        if lds: I['r'] |= regs('m0')
    elif mn.startswith('ds_'):
        I['ds'] = True
        allr = [regs(x) for x in ops]
        if mn.startswith(('ds_read', 'ds_bpermute', 'ds_permute', 'ds_swizzle')) or '_rtn' in mn:
            I['w'] = allr[0]; I['r'] = set().union(*allr[1:]) if len(allr) > 1 else set()
        else: I['r'] = set().union(*allr)
    elif mn.startswith('s_'):
        I['salu'] = True
        if mn.startswith(('s_cmp', 's_cbranch', 's_branch', 's_waitcnt', 's_barrier', 's_nop', 's_sleep', 's_endpgm', 's_setprio','s_bitcmp')):
            I['r'] = set().union(*[regs(x) for x in ops]) if ops else set()
        else:
            I['w'] = regs(ops[0]); I['r'] = set().union(*[regs(x) for x in ops[1:]]) if len(ops) > 1 else set()
            if 'saveexec' in mn: I['w'] |= regs('exec')
    return I
def states(I, ops):
    if I['mn'] == 's_nop': return int(ops[0], 0) + 1
    return 1
def check(text, verbose=True):
    hist = []
    t = 0; bad = 0
    for ln, line in enumerate(text.split('\n'), 1):
        p = parse(line)
        if p is None: continue
        mn, ops, mods = p
        I = classify(mn, ops, mods)
        V = lambda s: {x for x in s if x[0] in 'va'}
        S = lambda s: {x for x in s if x[0] == 's'}
        for (P, pl, pline, pt) in hist[-24:]:
            d = t - pt
            need = 0; why = ''
            def req(n, w):
                nonlocal need, why
                if n > need: need, why = n, w
            if P['valu'] and not P['mfma']:
                vw = V(P['w']); sw = S(P['w'])
                if I['mfma'] and vw & I['r']: req(2, 'valu->mfma')
                if I['dpp'] and vw & I['r']: req(2, 'valu->dpp')
                if I['perml'] and vw & I['r']: req(2, 'valu->permlane')
                if I['rl'] and vw & I['r']: req(1, 'valu->readlane')
                if P['trans'] and I['valu'] and not I['trans'] and vw & I['r']: req(1, 'trans->valu')
                if I['vmem'] and sw & I['r']: req(5, 'valu sgpr->vmem')
                if I['valu'] and sw & S(I['r']): req(4 if I['rl'] else 2, 'valu sgpr->valu')
                if I['valu'] and I['mn'].startswith(('v_cndmask','v_addc','v_subb')) and sw & regs('vcc') and ('vcc' in ops): req(2, 'vcc->cndmask')
                if sw & regs('exec') and (I['dpp']): req(5, 'valu exec->dpp')
                if sw & regs('exec') and (I['mfma'] or I['perml'] or I['rl']): req(4, 'valu exec->mfma/perml/rl')
            if P['mfma']:
                n = P['passes']
                big = {4: 8, 8: 12}[n]; ovl = {4: 6, 8: 10}[n]; war = {4: 3, 8: 7}[n]
                if I['mfma']:
                    if P['w'] & I['ab']: req(big, 'mfma D->mfma AB')
                    if P['w'] & I['srcc'] and P['w'] != I['srcc']: req(ovl, 'mfma D->mfma C overlap')
                    if P['w'] & I['w'] and not (P['w'] == I['srcc']): req(big, 'mfma WAW')
                elif I['valu']:
                    if P['w'] & (I['r'] | I['w']): req(big, 'mfma D->valu')
                    if P['srcc'] & I['w']: req(war, 'mfma C WAR')
                elif I['vmem'] or I['ds']:
                    if P['w'] & (I['r'] | I['w']): req(big, 'mfma D->mem')
            if P['wide'] and (P['wide'] & I['w']): req(2 if I['valu'] else 1, 'wide store WAR')
            if P['salu'] and ('s', 124) in P['w'] and I['ldsdma']: req(1, 'm0->ldsdma')
            if need > d:
                bad += 1
                if verbose: print(f"HAZARD {why}: need {need} have {d}\n   L{pl}: {pline.strip()}\n   L{ln}: {line.strip()}")
        t += states(I, ops)
        hist.append((I, ln, line, t))
        if mn in ('s_branch', 's_endpgm'): hist = []
    return bad
if __name__ == '__main__':
    print("hazards:", check(open(sys.argv[1]).read()))
```
